```python
import torch

def _softmax(x, axis=-1):
    return torch.softmax(x, dim=axis)
def _gelu(x):
    return torch.nn.functional.gelu(x, approximate="tanh")
def _silu(x):
    return torch.nn.functional.silu(x)
def _sigmoid(x):
    return torch.sigmoid(x)
def _layernorm(x, axis=-1, eps=1e-5):
    m = x.mean(dim=axis, keepdim=True)
    v = x.var(dim=axis, keepdim=True, unbiased=False)
    return (x - m) / torch.sqrt(v + eps)
def _scatter_add(tgt, idx, src, axis=0):
    return tgt.clone().index_add_(axis, idx, src)
def _segment_sum(src, seg, n):
    out = torch.zeros((n,) + src.shape[1:], dtype=src.dtype)
    return out.index_add_(0, seg, src)
def _pad(x, pw):
    flat = tuple(v for pair in reversed(pw) for v in pair)
    return torch.nn.functional.pad(x, flat)

kernel_name = 'recurrent_scan__ssm_conv_s4d__mixer_channel_mlp__prompt'

def setup_inputs():

    _w = (lambda a: (lambda t: t.to(torch.bfloat16) if t.is_floating_point() else t)(torch.as_tensor(a)))
    def _A_setup():
        Bsz, L, D, N = 1, 2048, 576, 128
        return {
            "u": _w((lambda *s: torch.randn(*s, dtype=torch.bfloat16) * 0.05)(Bsz, L, D)),
            "log_A_real": _w((lambda *s: torch.randn(*s, dtype=torch.bfloat16) * 3.2)(D, N) * 0.5),
            "A_imag": _w((lambda *s: torch.randn(*s, dtype=torch.bfloat16) * 0.2)(D, N) * 3.14),
            "C_real": _w((lambda *s: torch.randn(*s, dtype=torch.bfloat16) * 0.4)(D, N) / N ** 0.5),
            "C_imag": _w((lambda *s: torch.randn(*s, dtype=torch.bfloat16) * 0.4)(D, N) / N ** 0.5),
            "log_dt": _w((lambda *s: torch.randn(*s, dtype=torch.bfloat16) * 0.2)(D) * 0.5 - 4.0),
            "D_skip": _w((lambda *s: torch.randn(*s, dtype=torch.bfloat16) * 0.2)(D)),
        }
    _A_in = _A_setup()

    def _B_setup():
        B, S, D, F = 1, 2048, 576, 4608
        return {
            "x": _w((lambda *s: torch.randn(*s, dtype=torch.bfloat16) * 0.05)(B, S, D)),
            "w1": _w((lambda *s: torch.randn(*s, dtype=torch.bfloat16) * 0.8)(D, F) * (D ** -0.5)),
            "b1": _w((lambda *s: torch.randn(*s, dtype=torch.bfloat16) * 0.4)(F)),
            "w2": _w((lambda *s: torch.randn(*s, dtype=torch.bfloat16) * 0.1)(F, D) * (F ** -0.5)),
            "b2": _w((lambda *s: torch.randn(*s, dtype=torch.bfloat16) * 0.1)(D)),
        }
    _B_in = _B_setup()

    return {
        "A_u": _A_in["u"],
        "A_log_A_real": _A_in["log_A_real"],
        "A_A_imag": _A_in["A_imag"],
        "A_C_real": _A_in["C_real"],
        "A_C_imag": _A_in["C_imag"],
        "A_log_dt": _A_in["log_dt"],
        "A_D_skip": _A_in["D_skip"],
        "B_x": _B_in["x"],
        "B_w1": _B_in["w1"],
        "B_b1": _B_in["b1"],
        "B_w2": _B_in["w2"],
        "B_b2": _B_in["b2"],
    }

def reference(A_u, A_log_A_real, A_A_imag, A_C_real, A_C_imag, A_log_dt, A_D_skip, B_x, B_w1, B_b1, B_w2, B_b2):
    def _A_ref(u, log_A_real, A_imag, C_real, C_imag, log_dt, D_skip):
        L = u.shape[1]
        dt = torch.exp(log_dt)
        A = -torch.exp(log_A_real) + 1j * A_imag
        C = (C_real + 1j * C_imag) * dt[:, None]
        pos = (lambda x, dt: x.to(dt))(torch.arange(L), log_dt.dtype)
        P = torch.exp((A * dt[:, None])[:, :, None] * pos[None, None, :])
        K = 2.0 * torch.einsum("dn,dnl->dl", C, P).real
        L2 = 2 * L
        u_t = (lambda x, *d: x.permute(*d))(u, 0, 2, 1)
        Kf = (lambda x, *a, **k: torch.fft.rfft(x.float(), *a, **k))(K, L2)
        Uf = (lambda x, *a, **k: torch.fft.rfft(x.float(), *a, **k))(u_t, L2)
        y = (lambda x, *a, **k: torch.fft.irfft(x, *a, **k).to(torch.bfloat16))(Uf * Kf[None, :, :], L2)[:, :, :L]
        y = (lambda x, *d: x.permute(*d))(y, 0, 2, 1)
        return y + u * D_skip[None, None, :]

    def _B_ref(x, w1, b1, w2, b2):
        y = _layernorm(x, axis=-1)
        h = _gelu(torch.einsum("bsd,df->bsf", y, w1) + b1)
        return torch.einsum("bsf,fd->bsd", h, w2) + b2

    x = A_u
    xn = _layernorm(x, axis=-1)
    s = _A_ref(xn, A_log_A_real, A_A_imag, A_C_real, A_C_imag, A_log_dt, A_D_skip)
    g = _silu(_B_ref(xn, B_w1, B_b1, B_w2, B_b2))
    return x + s * g
```

```python
import re

TRANS = ('v_exp_f32', 'v_log_f32', 'v_rcp_f32', 'v_rsq_f32', 'v_sqrt_f32', 'v_sin_f32', 'v_cos_f32', 'v_rcp_iflag_f32')
DPP_KEYS = ('quad_perm', 'row_shl', 'row_shr', 'row_ror', 'wave_shl', 'wave_shr', 'wave_rol', 'wave_ror',
            'row_mirror', 'row_half_mirror', 'row_bcast')

def _regs(tok):
    tok = tok.strip()
    neg = tok.lstrip('-')
    m = re.fullmatch(r'abs\((.*)\)', neg)
    if m: neg = m.group(1)
    neg = neg.strip('|')
    m = re.fullmatch(r'([vsa])(\d+)', neg)
    if m: return [(m.group(1), int(m.group(2)))]
    m = re.fullmatch(r'([vsa])\[(\d+):(\d+)\]', neg)
    if m: return [(m.group(1), k) for k in range(int(m.group(2)), int(m.group(3)) + 1)]
    if neg == 'vcc': return [('s', 'vcc')]
    if neg in ('vcc_lo', 'vcc_hi'): return [('s', 'vcc')]
    if neg == 'exec': return [('s', 'exec')]
    if neg == 'm0': return [('s', 'm0')]
    return []

class Ins:
    __slots__ = ('text', 'op', 'kind', 'wv', 'rv', 'wsg', 'rsg', 'dpp', 'dppsrc', 'lane', 'perm', 'wide', 'lds_dma',
                 'D', 'A', 'B', 'C', 'passes', 'label', 'target', 'nop', 'storedata', 'uncond', 'lanesel')
    def __init__(self, text):
        self.text = text
        self.label = None; self.target = None; self.nop = 1; self.uncond = False
        self.wv = set(); self.rv = set(); self.wsg = set(); self.rsg = set()
        self.dpp = False; self.dppsrc = set(); self.lane = False; self.perm = False; self.wide = False
        self.lds_dma = False; self.D = self.A = self.B = self.C = None; self.passes = 0
        self.storedata = set(); self.lanesel = set()
        t = text.split(';')[0].strip()
        if not t:
            self.op = ''; self.kind = 'none'; self.nop = 0; return
        if t.endswith(':'):
            self.op = ''; self.kind = 'label'; self.label = t[:-1]; self.nop = 0; return
        if t.startswith('.'):
            self.op = ''; self.kind = 'none'; self.nop = 0; return
        parts = t.split(None, 1)
        op = parts[0]; rest = parts[1] if len(parts) > 1 else ''
        self.op = op
        ops = []; depth = 0; cur = ''
        for ch in rest:
            if ch == '[': depth += 1
            if ch == ']': depth -= 1
            if ch == ',' and depth == 0: ops.append(cur.strip()); cur = ''
            else: cur += ch
        if cur.strip(): ops.append(cur.strip())
        mods = ''
        if ops:
            lp = ops[-1].split(None, 1)
            if len(lp) > 1 and not ops[-1].startswith('hwreg') and not op.startswith('s_waitcnt'):
                ops[-1] = lp[0]; mods = lp[1]
        V = lambda toks: set(r for tk in toks for r in _regs(tk) if r[0] in 'va')
        S = lambda toks: set(r for tk in toks for r in _regs(tk) if r[0] == 's')
        base = re.sub(r'_(e32|e64|dpp|sdwa)$', '', op)
        if op.startswith('v_mfma'):
            self.kind = 'mfma'
            self.D = tuple(_regs(ops[0])); self.A = tuple(_regs(ops[1])); self.B = tuple(_regs(ops[2])); self.C = tuple(_regs(ops[3]))
            self.passes = 8 if '32x32' in op else 4
            self.wv = set(self.D); self.rv = set(self.A) | set(self.B) | set(r for r in self.C if r[0] in 'va')
        elif op.startswith('v_'):
            self.kind = 'valu'
            if base in TRANS: self.kind = 'trans'
            if base.startswith('v_dot2'): self.kind = 'dot'
            if base.startswith('v_cmp'):
                self.wsg = set(_regs(ops[0])); srcs = ops[1:]
            elif base in ('v_readfirstlane_b32', 'v_readlane_b32'):
                self.wsg = set(_regs(ops[0])); srcs = ops[1:2]; self.lane = True
                if len(ops) > 2: self.lanesel = S(ops[2:3])
            elif base in ('v_add_co_u32', 'v_sub_co_u32', 'v_addc_co_u32', 'v_subb_co_u32', 'v_subrev_co_u32'):
                self.wv = V(ops[0:1]); self.wsg = S(ops[1:2]); srcs = ops[2:]
            elif base.startswith('v_permlane') and 'swap' in base:
                self.wv = V(ops[0:2]); srcs = ops[0:2]; self.perm = True
            else:
                self.wv = V(ops[0:1]); srcs = ops[1:]
                if base in ('v_fmac_f32', 'v_dot2c_f32_bf16', 'v_dot2c_f32_f16', 'v_writelane_b32', 'v_pk_fmac_f16'): srcs = ops
            self.rv = V(srcs); self.rsg = S(srcs) | self.lanesel
            if base == 'v_cndmask_b32' and len(ops) == 3: self.rsg.add(('s', 'vcc'))
            if any(k in mods for k in DPP_KEYS):
                self.dpp = True; self.dppsrc = V(srcs[0:1])
                self.rv |= self.wv
        elif op.startswith('buffer_') or op.startswith('global_'):
            self.kind = 'vmem'
            words = mods.split()
            islds = 'lds' in words or '_lds_' in op
            self.lds_dma = islds
            if op.startswith('buffer_wbl2') or op.startswith('buffer_inv'):
                pass
            elif op.startswith('buffer_'):
                if islds:
                    self.rv = V(ops[0:1]); self.rsg = S(ops[1:])
                elif '_load_' in op:
                    self.wv = V(ops[0:1]); self.rv = V(ops[1:2]); self.rsg = S(ops[2:])
                    if 'd16' in op: self.rv |= self.wv
                elif '_store_' in op:
                    self.storedata = V(ops[0:1]); self.rv = V(ops[0:2]); self.rsg = S(ops[2:])
                    self.wide = ('x3' in op or 'x4' in op)
                else:
                    self.rv = V(ops[0:2]); self.rsg = S(ops[2:])
                    if 'sc0' in words: self.wv = V(ops[0:1])
            else:
                if islds:
                    self.rv = V(ops[0:1]); self.rsg = S(ops[1:])
                elif '_load_' in op:
                    self.wv = V(ops[0:1]); self.rv = V(ops[1:2]); self.rsg = S(ops[2:])
                elif '_store_' in op:
                    self.storedata = V(ops[1:2]); self.rv = V(ops[0:2]); self.rsg = S(ops[2:])
                    self.wide = ('x3' in op or 'x4' in op)
                else:
                    self.rv = V(ops[0:2]); self.rsg = S(ops[2:])
            if islds: self.rsg.add(('s', 'm0'))
        elif op.startswith('ds_'):
            self.kind = 'ds'
            if op.startswith('ds_read') or op.startswith('ds_bpermute') or op.startswith('ds_swizzle'):
                self.wv = V(ops[0:1]); self.rv = V(ops[1:])
                if 'd16' in op: self.rv |= self.wv
            elif '_rtn' in op:
                self.wv = V(ops[0:1]); self.rv = V(ops[1:])
            else:
                self.rv = V(ops)
        elif op.startswith('s_'):
            self.kind = 'salu'
            if op == 's_nop':
                self.nop = int(ops[0], 0) + 1; self.kind = 'other'
            elif op in ('s_waitcnt', 's_barrier', 's_endpgm', 's_sleep', 's_setprio'):
                self.kind = 'other'
                if op == 's_endpgm': self.uncond = True
            elif op.startswith('s_cbranch') or op == 's_branch':
                self.kind = 'other'; self.target = ops[0]
                self.uncond = (op == 's_branch')
            elif op.startswith('s_cmp') or op.startswith('s_bitcmp'):
                self.rsg = S(ops)
            elif op.startswith('s_load') or op.startswith('s_memtime') or op.startswith('s_memrealtime'):
                self.wsg = S(ops[0:1]); self.rsg = S(ops[1:2]); self.kind = 'smem'
            else:
                self.wsg = S(ops[0:1]); self.rsg = S(ops[1:])
                if 'saveexec' in op: self.wsg.add(('s', 'exec'))
        else:
            raise ValueError('cannot parse: ' + text)

def _need(p, c):
    n = 0
    pv = p.kind in ('valu', 'trans', 'dot')
    cv = c.kind in ('valu', 'trans', 'dot')
    if pv:
        if p.wv:
            if c.dpp and (p.wv & c.dppsrc): n = max(n, 2)
            if c.lane and (p.wv & c.rv): n = max(n, 1)
            if c.perm and (p.wv & c.rv): n = max(n, 2)
            if c.kind == 'mfma' and (p.wv & c.rv): n = max(n, 2)
            if p.kind == 'trans' and cv and c.kind != 'trans' and (p.wv & c.rv): n = max(n, 1)
            if p.kind == 'trans' and c.kind == 'trans' and (p.wv & c.rv): n = max(n, 1)
            if p.kind == 'dot' and cv:
                if c.op == p.op:
                    ab = set()
                    toks = c.text.split(';')[0].split(None, 1)[1].split(',')
                    if c.op.startswith('v_dot2c'): ab = set(r for tk in toks[1:3] for r in _regs(tk))
                    else: ab = set(r for tk in toks[1:3] for r in _regs(tk))
                    if p.wv & ab: n = max(n, 3)
                elif (p.wv & (c.rv | c.wv)): n = max(n, 3)
            if p.kind == 'dot' and c.kind in ('vmem', 'ds') and (p.wv & c.rv): n = max(n, 3)
        if p.wsg:
            if cv and (p.wsg & c.lanesel): n = max(n, 4)
            if cv and (p.wsg & c.rsg): n = max(n, 2)
            if c.kind == 'vmem' and (p.wsg & c.rsg): n = max(n, 5)
            if c.kind == 'mfma' and (p.wsg & c.rsg): n = max(n, 2)
    if p.kind == 'mfma':
        D = set(p.D); raw = 8 if p.passes == 4 else 12; part = 6 if p.passes == 4 else 10
        if c.kind == 'mfma':
            cC = set(r for r in c.C if r[0] in 'va')
            if D & (set(c.A) | set(c.B)): n = max(n, raw)
            if D & cC:
                if not (c.C == p.D and c.passes == p.passes): n = max(n, part)
            elif D & set(c.D):
                n = max(n, part)
        elif cv:
            if D & (c.rv | c.wv): n = max(n, raw)
            pc = set(r for r in p.C if r[0] in 'va')
            if pc & c.wv: n = max(n, 3 if p.passes == 4 else 7)
        elif c.kind in ('vmem', 'ds'):
            if D & (c.rv | c.wv): n = max(n, raw)
    if p.kind == 'vmem' and p.wide and p.storedata:
        if cv and (p.storedata & c.wv): n = max(n, 2)
        elif c.kind in ('vmem', 'ds', 'mfma') and (p.storedata & c.wv): n = max(n, 1)
    if p.kind == 'salu' and (('s', 'm0') in p.wsg) and c.lds_dma: n = max(n, 1)
    return n

MAXD = 12

def fix_hazards(lines):
    ins = [Ins(l) for l in lines]
    out = []
    srcs = {}
    for x in ins:
        if x.target: srcs.setdefault(x.target, []).append(x)
    pos = {}
    for k, x in enumerate(ins): pos[id(x)] = k
    pad = [0] * len(ins)
    def deficit(k):
        c = ins[k]
        if c.kind in ('none', 'label', 'other', 'salu', 'smem'): return 0
        worst = 0
        stack = [(k, pad[k])]
        seen = {}
        while stack:
            j, d = stack.pop()
            preds = []
            if j > 0 and not ins[j - 1].uncond: preds.append(j - 1)
            if ins[j].label:
                for s in srcs.get(ins[j].label, []): preds.append(pos[id(s)])
            for q in preds:
                p = ins[q]
                if p.kind not in ('none', 'label'):
                    need = _need(p, c)
                    if need > d: worst = max(worst, need - d)
                nd = d + p.nop + pad[q]
                if nd < MAXD and seen.get(q, 99) > nd:
                    seen[q] = nd; stack.append((q, nd))
        return worst
    changed = True; rounds = 0
    while changed:
        changed = False; rounds += 1
        for k in range(len(ins)):
            d = deficit(k)
            if d > 0:
                pad[k] += d; changed = True
        assert rounds < 10
    res = []; nn = 0
    for k, x in enumerate(ins):
        p = pad[k]
        while p > 0:
            q = min(p, 16); res.append(f'    s_nop {q - 1}'); p -= q; nn += 1
        res.append(x.text)
    return res, nn

class Asm:
    def __init__(self):
        self.lines = []
        self.uid = 0
    def __call__(self, text):
        for l in text.split('\n'):
            l = l.strip()
            if l:
                self.lines.append(l if l.endswith(':') else '    ' + l)
    def label(self, name): self.lines.append(name + ':')
    def new_label(self, stem):
        self.uid += 1
        return f'L_{stem}_{self.uid}'
    def comment(self, t): self.lines.append('    ; ' + t)
    def finish(self):
        return fix_hazards(self.lines)

def vr(a, n=1):
    return f'v{a}' if n == 1 else f'v[{a}:{a + n - 1}]'
def sr(a, n=1):
    return f's{a}' if n == 1 else f's[{a}:{a + n - 1}]'
```

```python
from asmlib import Asm, vr, sr

KNAME = 'recurrent_scan__ssm_conv_s4d__mixer_channel_mlp__prompt_kernel'
L, D, F, N = 2048, 576, 4608, 128

WS_WP   = 0x0
SLICE_B = 1296 * 1024
WS_XNT  = 0xA20000
WS_ST   = 0xC60000
WS_PART = 0xEA0000
WS_CNT  = 0x20A0000
WS_DBG  = 0x2100000
WS_SIZE = 0x10000000

LDS_Y    = 0
LDS_H    = 73728
LDS_TAB  = 0
TAB_ROW  = 544
TAB_SZ   = 59 * TAB_ROW
LDS_UCP  = 73728
UCP_COPY = 4640
UCP_CH   = 4 * UCP_COPY
LDS_KREV = 133632
KREV_CH  = 4608
KREV_PAD = 256
LDS_STG  = 98304
LDS_STG2 = 131072
LDS_MISC = 147456
LDS_XT   = LDS_MISC
LDS_PAR  = LDS_MISC + 9216
LDS_CNT  = LDS_PAR + 64
LDS_B1   = LDS_CNT + 64
LDS_B2   = LDS_B1 + 2304
LDS_TOTAL = 163840

S_W, S_I, S_J, S_WV = 2, 3, 4, 5
P_X, P_LOGA, P_AIM, P_CRE, P_CIM, P_LOGDT, P_DSK = 16, 18, 20, 22, 24, 26, 28
P_W1, P_B1, P_W2, P_B2, P_OUT, P_DBG, P_WS = 32, 34, 36, 38, 40, 42, 44
SRD_X, SRD_WS, SRD_W1, SRD_W2, SRD_OUT, SRD_DBG = 48, 52, 56, 60, 64, 68

def magic(d, maxval):
    for sh in range(1, 31):
        m = -(-(1 << sh) // d)
        if m * maxval >= (1 << 32): continue
        if all((v * m) >> sh == v // d for v in range(maxval + 1)):
            return m, sh
    raise ValueError((d, maxval))

def sdiv(a, dst, src, d, maxval):
    m, sh = magic(d, maxval)
    a(f's_mul_i32 s{dst}, s{src}, {m}')
    a(f's_lshr_b32 s{dst}, s{dst}, {sh}')

def srd(a, s, ptr, nbytes):
    a(f's_mov_b32 s{s}, s{ptr}')
    a(f's_and_b32 s{s+1}, s{ptr+1}, 0xffff')
    a(f's_mov_b32 s{s+2}, {nbytes}')
    a(f's_mov_b32 s{s+3}, 0x20000')

def f32bits(x):
    import struct
    return struct.unpack('<I', struct.pack('<f', x))[0]
def fhex(x): return hex(f32bits(x))

def stream_base_kb(wave):
    return 144 * wave + 36 * max(wave - 4, 0)
def ntiles(wave): return 4 if wave < 4 else 5

def ts_of(j): return (9 * j) // 2
def tile2(j, wave, t):
    tpp = wave + 8 * t if t < 4 else 32 + (wave - 4)
    return (ts_of(j) + tpp) % 36
```

```python
from common import *

RING = 208
S_SLOT, S_CCH, S_UB, S_KB = 72, 73, 74, 75

def arrive_a(a):
    l = a.new_label('arrA')
    a('s_cmp_lg_u32 s5, 0')
    a(f's_cbranch_scc1 {l}')
    a('s_and_b32 s6, s2, 3')
    a('s_lshl_b32 s6, s6, 6')
    a('v_mov_b32 v2, s6')
    a('v_mov_b32 v3, 1')
    a('s_mov_b64 s[46:47], exec')
    a('s_mov_b64 exec, 1')
    a(f'buffer_atomic_add v3, v2, s[{SRD_DBG}:{SRD_DBG+3}], 0 offen sc1')
    a(f'v_mov_b32 v2, {LDS_CNT}')
    a('v_mov_b32 v3, 0')
    a('ds_write_b32 v2, v3')
    a('s_mov_b64 exec, s[46:47]')
    a.label(l)

SPIN_MAX = 2000000

def wait_a(a):
    l = a.new_label('waitA'); lp = a.new_label('pollA')
    a('s_cmp_lg_u32 s5, 0')
    a(f's_cbranch_scc1 {l}')
    a('v_and_b32 v2, 3, v1')
    a('v_lshlrev_b32 v2, 6, v2')
    a('s_mov_b32 s6, 0')
    a.label(lp)
    a(f'buffer_load_dword v3, v2, s[{SRD_DBG}:{SRD_DBG+3}], 0 offen sc1')
    a('s_add_u32 s6, s6, 1')
    a(f's_cmp_gt_u32 s6, {SPIN_MAX}')
    a(f's_cbranch_scc1 {l}')
    a('s_waitcnt vmcnt(0)')
    a('v_cmp_ne_u32 vcc, 64, v3')
    a('s_nop 4')
    a(f's_cbranch_vccnz {lp}')
    a.label(l)

def conv_setup(a):
    a(f's_lshr_b32 s{S_SLOT}, s5, 1')
    a(f's_min_u32 s{S_SLOT}, s{S_SLOT}, 2')
    a(f's_lshl_b32 s{S_CCH}, s{S_SLOT}, 8')
    a(f's_add_u32 s{S_CCH}, s{S_CCH}, s2')
    a(f's_mul_i32 s{S_UB}, s{S_SLOT}, {UCP_CH}')
    a(f's_add_u32 s{S_UB}, s{S_UB}, {LDS_UCP}')
    a(f's_mul_i32 s{S_KB}, s{S_SLOT}, {KREV_CH}')
    a(f's_add_u32 s{S_KB}, s{S_KB}, {LDS_KREV + KREV_PAD}')

U0 = 64

def u_loads(a, ngroups, sgrp):
    a(f's_lshl_b32 s6, s{S_CCH}, 12')
    a(f's_lshl_b32 s7, s{sgrp}, 10')
    a('s_add_u32 s6, s6, s7')
    a(f's_add_u32 s6, s6, {WS_XNT - 8}')
    a('v_lshlrev_b32 v2, 4, v1')
    for k in range(ngroups):
        a(f'buffer_load_dwordx2 v[{U0+8*k+2}:{U0+8*k+3}], v2, s[{SRD_WS}:{SRD_WS+3}], s6 offen offset:{1024*k} sc1')
        a(f'buffer_load_dwordx4 v[{U0+8*k+4}:{U0+8*k+7}], v2, s[{SRD_WS}:{SRD_WS+3}], s6 offen offset:{1024*k+8} sc1')

def u_build(a, ngroups, sgrp):
    T = 96
    a(f's_lshl_b32 s6, s{sgrp}, 10')
    a(f's_add_u32 s6, s6, s{S_UB}')
    a('s_add_u32 s6, s6, 384')
    a('v_lshl_add_u32 v2, v1, 4, s6')
    lz = a.new_label('ub_nz')
    a(f's_cmp_lg_u32 s{sgrp}, 0')
    a(f's_cbranch_scc1 {lz}')
    a('v_cmp_eq_u32 vcc, 0, v1')
    a(f'v_cndmask_b32 v{U0+2}, v{U0+2}, 0, vcc')
    a(f'v_cndmask_b32 v{U0+3}, v{U0+3}, 0, vcc')
    for r in range(4): a(f'v_mov_b32 v{T+r}, 0')
    a(f'v_lshlrev_b32 v3, 4, v1')
    a(f'v_add_u32 v3, s{S_UB}, v3')
    a('v_cmp_gt_u32 vcc, 24, v1')
    a('s_and_saveexec_b64 s[46:47], vcc')
    for phi in range(4):
        a(f'ds_write_b128 v3, v[{T}:{T+3}] offset:{phi*UCP_COPY}')
    a('s_mov_b64 exec, s[46:47]')
    a.label(lz)
    for k in range(ngroups):
        m2, m1, d = U0 + 8*k + 2, U0 + 8*k + 3, U0 + 8*k + 4
        q0, q1, q2 = T + 12*k, T + 12*k + 4, T + 12*k + 8
        a(f'v_alignbyte_b32 v{q0}, v{m1}, v{m2}, 2')
        a(f'v_alignbyte_b32 v{q0+1}, v{d}, v{m1}, 2')
        a(f'v_alignbyte_b32 v{q0+2}, v{d+1}, v{d}, 2')
        a(f'v_alignbyte_b32 v{q0+3}, v{d+2}, v{d+1}, 2')
        a(f'v_mov_b32 v{q2}, v{q0+1}')
        a(f'v_mov_b32 v{q2+1}, v{q0+2}')
        a(f'v_mov_b32 v{q2+2}, v{q0+3}')
        a(f'v_alignbyte_b32 v{q2+3}, v{d+3}, v{d+2}, 2')
        a(f'v_mov_b32 v{q1}, v{m1}')
        a(f'v_mov_b32 v{q1+1}, v{d}')
        a(f'v_mov_b32 v{q1+2}, v{d+1}')
        a(f'v_mov_b32 v{q1+3}, v{d+2}')
        a(f'ds_write_b128 v2, v[{q0}:{q0+3}] offset:{1024*k}')
        a(f'ds_write_b128 v2, v[{q1}:{q1+3}] offset:{1024*k + UCP_COPY}')
        a(f'ds_write_b128 v2, v[{q2}:{q2+3}] offset:{1024*k + 2*UCP_COPY}')
        a(f'ds_write_b128 v2, v[{d}:{d+3}] offset:{1024*k + 3*UCP_COPY}')

KF = [64, 128]; UF = [96, 160]; ACC = 192
VU, VK = 248, 249

def conv_body(a, tiles):
    tmax = max(tiles)
    nf = tmax + 1
    pairs = [(ti, t, k1) for ti, t in enumerate(tiles) for k1 in range(t + 1)]
    a('v_and_b32 v2, 15, v1')
    a('v_lshrrev_b32 v3, 4, v1')
    a('v_and_b32 v4, 3, v2')
    a('v_lshrrev_b32 v5, 2, v2')
    a(f'v_mul_u32_u24 v4, {UCP_COPY}, v4')
    a('v_lshl_add_u32 v4, v5, 7, v4')
    a('v_lshl_add_u32 v4, v3, 4, v4')
    a(f's_add_u32 s6, s{S_UB}, 448')
    a(f'v_add_u32 v{VU}, s6, v4')
    a('v_lshlrev_b32 v4, 4, v3')
    a('v_lshlrev_b32 v5, 3, v2')
    a('v_sub_u32 v4, v4, v5')
    a(f's_add_u32 s6, s{S_KB}, {4152 - 3584}')
    a(f'v_add_u32 v{VK}, s6, v4')
    for ti in range(len(tiles)):
        for r in range(4): a(f'v_mov_b32 v{ACC+4*ti+r}, 0')
    def reads(st):
        out = []; seenK = set(); seenU = set()
        for (ti, t, k1) in pairs:
            tau = t - k1
            if k1 not in seenK:
                seenK.add(k1)
                out.append(f'ds_read_b64 v[{KF[st]+4*k1}:{KF[st]+4*k1+1}], v{VK} offset:{512*(7-k1)}')
                out.append(f'ds_read_b64 v[{KF[st]+4*k1+2}:{KF[st]+4*k1+3}], v{VK} offset:{512*(7-k1)+8}')
            if tau not in seenU:
                seenU.add(tau)
                out.append(f'ds_read_b128 v[{UF[st]+4*tau}:{UF[st]+4*tau+3}], v{VU} offset:{512*tau}')
        return out
    for r in reads(0): a(r)
    a(f'v_subrev_u32 v{VU}, 64, v{VU}')
    a(f'v_subrev_u32 v{VK}, 64, v{VK}')
    a('s_mov_b32 s6, 4')
    lp = a.new_label('conv')
    a.label(lp)
    for st in (0, 1):
        a('s_waitcnt lgkmcnt(0)')
        rd = reads(st ^ 1)
        per = -(-len(rd) // max(1, (len(pairs) * 2) // 3))
        for idx, (ti, t, k1) in enumerate(pairs):
            tau = t - k1
            for _ in range(per):
                if rd: a(rd.pop(0))
            ac = ACC + 4*ti
            a(f'v_mfma_f32_16x16x32_f16 v[{ac}:{ac+3}], v[{UF[st]+4*tau}:{UF[st]+4*tau+3}], v[{KF[st]+4*k1}:{KF[st]+4*k1+3}], v[{ac}:{ac+3}]')
        assert not rd
        a(f'v_subrev_u32 v{VU}, 64, v{VU}')
        a(f'v_subrev_u32 v{VK}, 64, v{VK}')
    a('s_sub_u32 s6, s6, 1')
    a('s_cmp_lg_u32 s6, 0')
    a(f's_cbranch_scc1 {lp}')
    a('s_waitcnt lgkmcnt(0)')
    T = 64
    a(f's_lshl_b32 s6, s{S_SLOT}, 4')
    a(f's_add_u32 s6, s6, {LDS_PAR}')
    a('v_mov_b32 v2, s6')
    a(f'ds_read_b64 v[{T}:{T+1}], v2')
    a('v_and_b32 v2, 15, v1')
    a('v_lshrrev_b32 v3, 4, v1')
    a('v_lshlrev_b32 v3, 7, v3')
    a('v_lshl_add_u32 v3, v2, 3, v3')
    a(f's_add_u32 s6, s{S_UB}, {3*UCP_COPY + 384}')
    a('v_add_u32 v4, s6, v3')
    for ti, t in enumerate(tiles):
        a(f'ds_read_b64 v[{T+2+2*ti}:{T+3+2*ti}], v4 offset:{512*t}')
    a(f's_lshl_b32 s7, s{S_CCH}, 12')
    a(f's_add_u32 s7, s7, {WS_ST}')
    a('s_waitcnt lgkmcnt(0)')
    W = T + 12
    for ti, t in enumerate(tiles):
        ac = ACC + 4*ti; u = T + 2 + 2*ti; w = W + 8*(ti % 2)
        a(f'v_cvt_f32_f16 v{w}, v{u}')
        a(f'v_cvt_f32_f16_sdwa v{w+1}, v{u} dst_sel:DWORD dst_unused:UNUSED_PAD src0_sel:WORD_1')
        a(f'v_cvt_f32_f16 v{w+2}, v{u+1}')
        a(f'v_cvt_f32_f16_sdwa v{w+3}, v{u+1} dst_sel:DWORD dst_unused:UNUSED_PAD src0_sel:WORD_1')
        for r in range(4):
            a(f'v_mul_f32 v{ac+r}, v{ac+r}, v{T}')
        for r in range(4):
            a(f'v_fma_f32 v{ac+r}, v{w+r}, v{T+1}, v{ac+r}')
        a(f'v_cvt_pk_bf16_f32 v{w+4}, v{ac}, v{ac+1}')
        a(f'v_cvt_pk_bf16_f32 v{w+5}, v{ac+2}, v{ac+3}')
        a(f'buffer_store_dwordx2 v[{w+4}:{w+5}], v3, s[{SRD_WS}:{SRD_WS+3}], s7 offen offset:{512*t} sc1')

def conv_done(a):
    a(f'v_mov_b32 v2, {LDS_CNT}')
    a('v_mov_b32 v3, 1')
    a('s_mov_b64 s[46:47], exec')
    a('s_mov_b64 exec, 1')
    a('ds_add_u32 v2, v3')
    a('s_mov_b64 exec, s[46:47]')
```

```python
import math
from common import *
from phase_pro import VX, VQ, VP, S_HASK, S_CH, bf16r, row_stats, normalize

LOG2E = 1.4426950408889634

def cmul(a, d, x, y, t):
    a(f'v_pk_mul_f32 v[{t}:{t+1}], v[{x}:{x+1}], v[{y}:{y+1}] op_sel:[0,0] op_sel_hi:[0,1]')
    a(f'v_pk_fma_f32 v[{d}:{d+1}], v[{x}:{x+1}], v[{y}:{y+1}], v[{t}:{t+1}] op_sel:[1,1,0] op_sel_hi:[1,0,1] neg_lo:[1,0,0]')

def tables(a):
    lskip = a.new_label('tab_skip')
    a(f's_cmp_eq_u32 s{S_HASK}, 0')
    a(f's_cbranch_scc1 {lskip}')
    la, ai, cr, ci, cr2, ci2, ldt, dsk = range(VP, VP + 8)
    T = 64
    XD = 64
    W1, W2, W128, W8, W16 = 82, 84, 86, 88, 90
    B0, B1 = 92, 94
    TP = [96, 98, 100, 102]
    PK = [104, 105, 106, 107]
    zr, zi, dt, t0, t1, t2 = 108, 109, 110, 111, 112, 113
    VA = 114
    a(f'v_and_b32 v{t0}, 0x7fff, v{cr}')
    a(f'v_and_b32 v{t1}, 0x7fff, v{ci}')
    a(f'v_max_u32 v{t0}, v{t0}, v{t1}')
    a(f'v_and_b32 v{t1}, 0x7fff, v{cr2}')
    a(f'v_and_b32 v{t2}, 0x7fff, v{ci2}')
    a(f'v_max3_u32 v{t0}, v{t0}, v{t1}, v{t2}')
    for dpp in ('quad_perm:[1,0,3,2]', 'quad_perm:[2,3,0,1]', 'row_half_mirror', 'row_mirror'):
        a(f'v_max_u32_dpp v{t0}, v{t0}, v{t0} {dpp} row_mask:0xf bank_mask:0xf')
    a(f'v_readlane_b32 s6, v{t0}, 0')
    a(f'v_readlane_b32 s7, v{t0}, 16')
    a(f'v_readlane_b32 s8, v{t0}, 32')
    a(f'v_readlane_b32 s9, v{t0}, 48')
    for r in (la, ai, cr, ci, ldt, dsk):
        a(f'v_lshlrev_b32 v{r}, 16, v{r}')
    a(f'v_mul_f32 v{dt}, {fhex(LOG2E)}, v{ldt}')
    a(f'v_mul_f32 v{zr}, {fhex(LOG2E)}, v{la}')
    a(f'v_exp_f32 v{dt}, v{dt}')
    a(f'v_exp_f32 v{zr}, v{zr}')
    a('s_max_u32 s6, s6, s7')
    a('s_max_u32 s8, s8, s9')
    a('s_max_u32 s6, s6, s8')
    a('s_lshr_b32 s6, s6, 7')
    a('s_max_u32 s6, s6, 1')
    a('s_min_u32 s6, s6, 252')
    a('s_sub_u32 s7, 253, s6')
    a('s_lshl_b32 s7, s7, 23')
    a('s_add_u32 s6, s6, 1')
    a('s_lshl_b32 s6, s6, 23')
    bf16r(a, dt, dt)
    bf16r(a, zr, zr)
    a(f'v_mul_f32 v{zr}, v{zr}, v{dt}')
    a(f'v_mul_f32 v{zi}, v{ai}, v{dt}')
    a(f'v_mul_f32 v{zr}, {fhex(-LOG2E)}, v{zr}')
    a(f'v_mul_f32 v{zi}, 0.15915494, v{zi}')
    a(f'v_add_f32 v{t0}, v{dt}, v{dt}')
    a(f'v_mul_f32 v{t0}, s6, v{t0}')
    a(f'v_mov_b32 v{t1}, v{dsk}')
    a('s_lshr_b32 s8, s5, 1')
    a('s_lshl_b32 s9, s8, 4')
    a(f's_add_u32 s9, s9, {LDS_PAR}')
    a(f'v_mov_b32 v{t2}, s9')
    a(f'ds_write_b64 v{t2}, v[{t0 + (t0 % 2)}:{t0 + (t0 % 2) + 1}]' if False else '')
    a(f'v_mov_b32 v{TP[0]}, v{t0}')
    a(f'v_mov_b32 v{TP[0]+1}, v{t1}')
    a(f'ds_write_b64 v{t2}, v[{TP[0]}:{TP[0]+1}]')
    a(f'v_mul_f32 v{XD}, s7, v{cr}')
    a(f'v_mul_f32 v{XD+1}, s7, v{ci}')
    a(f'v_sub_f32 v{XD+1}, 0, v{XD+1}')
    for (dst, p, conj) in ((W1, 1.0, True), (W8, 8.0, False), (W128, 128.0, True)):
        if p == 1.0:
            a(f'v_exp_f32 v{t0}, v{zr}')
            a(f'v_fract_f32 v{t1}, v{zi}')
        else:
            a(f'v_mul_f32 v{t0}, {fhex(p)}, v{zr}')
            a(f'v_mul_f32 v{t1}, {fhex(p)}, v{zi}')
            a(f'v_exp_f32 v{t0}, v{t0}')
            a(f'v_fract_f32 v{t1}, v{t1}')
        a(f'v_cos_f32 v{dst}, v{t1}')
        a(f'v_sin_f32 v{dst+1}, v{t1}')
        a(f'v_mul_f32 v{dst}, v{t0}, v{dst}')
        if conj:
            a(f'v_mul_f32 v{dst+1}, -v{t0}, v{dst+1}')
        else:
            a(f'v_mul_f32 v{dst+1}, v{t0}, v{dst+1}')
    a('s_lshr_b32 s8, s5, 1')
    a(f's_mul_i32 s8, s8, {TAB_SZ}')
    a('s_and_b32 s9, s5, 1')
    a('s_lshl_b32 s9, s9, 8')
    a('s_add_u32 s8, s8, s9')
    a(f's_add_u32 s8, s8, {LDS_TAB}')
    a(f'v_lshl_add_u32 v{VA}, v1, 2, s8')
    cnt = [0]
    def put(row, pair):
        pk = PK[cnt[0] % 4]; cnt[0] += 1
        a(f'v_cvt_pk_f16_f32 v{pk}, v{pair}, v{pair+1}')
        a(f'ds_write_b32 v{VA}, v{pk} offset:{row * TAB_ROW}')
    tp = [0]
    def mul(d, x, y):
        t = TP[tp[0] % 4]; tp[0] += 1
        cmul(a, d, x, y, t)
    mul(W2, W1, W1)
    mul(W16, W8, W8)
    a(f'v_mov_b32 v{PK[3]}, 0x3c00')
    a(f'ds_write_b32 v{VA}, v{PK[3]} offset:0')
    put(1, W8); put(2, W16)
    mul(XD + 2, XD, W1)
    mul(B1, W8, W16)
    mul(B0, W16, W16)
    for d in range(2, 9):
        mul(XD + 2 * d, XD + 2 * (d - 2), W2)
    put(3, B1); put(4, B0)
    brow = 5
    def bstep():
        nonlocal brow
        if brow <= 15:
            r = B1 if brow % 2 == 1 else B0
            mul(r, r, W16); put(brow, r); brow += 1
    for d in range(8):
        put(16 + d, XD + 2 * d)
        bstep()
    for d in range(9): mul(XD + 2 * d, XD + 2 * d, W128)
    for d in range(8):
        put(24 + d, XD + 2 * d)
        bstep()
    while brow <= 15: bstep()
    for c in (2, 3):
        for d in (0, 2, 4, 6, 8): mul(XD + 2 * d, XD + 2 * d, W128)
        for d in (0, 2, 4, 6, 8): put(32 + 5 * (c - 2) + d // 2, XD + 2 * d)
    for c in range(4, 8):
        for d in (0, 4): mul(XD + 2 * d, XD + 2 * d, W128)
        for d in (0, 4): put(42 + 2 * (c - 4) + d // 4, XD + 2 * d)
    for c in range(8, 17):
        mul(XD, XD, W128)
        put(50 + c - 8, XD)
    a.label(lskip)

def tasks(a):
    FA, FB = 64, 96
    ACC = 128
    VA = 132; T = 134
    S_SLOT, S_O, S_RND, S_T, S_K = 72, 73, 74, 75, 76
    a(f's_lshr_b32 s{S_SLOT}, s5, 2')
    a(f's_and_b32 s{S_O}, s5, 3')
    a(f's_mov_b32 s{S_RND}, 0')
    lloop = a.new_label('task'); lend = a.new_label('task_end')
    lo = [a.new_label(f'task_o{o}') for o in range(4)]
    a.label(lloop)
    a(f's_mul_i32 s{S_T}, s{S_SLOT}, {TAB_SZ}')
    a(f's_add_u32 s{S_T}, s{S_T}, {LDS_TAB}')
    a(f's_mul_i32 s{S_K}, s{S_SLOT}, {KREV_CH}')
    a(f's_add_u32 s{S_K}, s{S_K}, {LDS_KREV + KREV_PAD}')
    a(f'v_and_b32 v{T}, 15, v1')
    a(f'v_lshrrev_b32 v{T+1}, 4, v1')
    a(f'v_mul_u32_u24 v{VA}, {TAB_ROW}, v{T}')
    a(f'v_lshl_add_u32 v{VA}, v{T+1}, 4, v{VA}')
    a(f'v_add_u32 v{VA}, s{S_T}, v{VA}')
    for ks in range(8):
        a(f'ds_read_b128 v[{FA+4*ks}:{FA+4*ks+3}], v{VA} offset:{ks*64}')
    for o in range(1, 4):
        a(f's_cmp_eq_u32 s{S_O}, {o}')
        a(f's_cbranch_scc1 {lo[o]}')
    col, g = T, T + 1
    rowbase = [16, 32, 42, 50]
    def products(o):
        for ks in range(8):
            a(f'ds_read_b128 v[{FB+4*ks}:{FB+4*ks+3}], v{VA} offset:{rowbase[o]*TAB_ROW + ks*64}')
        for ks in range(8):
            a(f's_waitcnt lgkmcnt({7-ks})')
            A, B = (FB, FA) if o == 0 else (FA, FB)
            C = '0' if ks == 0 else f'v[{ACC}:{ACC+3}]'
            a(f'v_mfma_f32_16x16x32_f16 v[{ACC}:{ACC+3}], v[{A+4*ks}:{A+4*ks+3}], v[{B+4*ks}:{B+4*ks+3}], {C}')
    V = [ACC, ACC + 1, ACC + 2, ACC + 3]
    ad, t0, t1, t2, t3, t4, t5 = T + 2, T + 3, T + 4, T + 5, T + 6, T + 7, T + 8
    P0 = 144
    products(0)
    a(f'v_lshrrev_b32 v{t0}, 1, v{g}')
    a(f'v_lshlrev_b32 v{t0}, 8, v{t0}')
    a(f'v_lshl_add_u32 v{t0}, v{col}, 4, v{t0}')
    a(f'v_and_b32 v{t1}, 1, v{g}')
    a(f'v_lshl_add_u32 v{t0}, v{t1}, 3, v{t0}')
    a(f's_add_u32 s6, s{S_K}, 4088')
    a(f'v_sub_u32 v{ad}, s6, v{t0}')
    a(f'v_cvt_pk_f16_f32 v{P0}, v{V[3]}, v{V[2]}')
    a(f'v_cvt_pk_f16_f32 v{P0+1}, v{V[1]}, v{V[0]}')
    a(f'ds_write_b64 v{ad}, v[{P0}:{P0+1}]')
    a(f's_add_u32 s6, s{S_K}, 4096')
    a(f'v_lshl_add_u32 v{ad}, v1, 2, s6')
    a(f'v_mov_b32 v{t0}, 0')
    a('v_cmp_gt_u32 vcc, 32, v1')
    a('s_and_saveexec_b64 s[46:47], vcc')
    a(f'ds_write_b32 v{ad}, v{t0}')
    a('s_mov_b64 exec, s[46:47]')
    a(f's_branch {lend}')
    a.label(lo[1])
    products(1)
    a(f'v_cmp_le_u32 vcc, 5, v{col}')
    a(f'v_cndmask_b32 v{t0}, 0, 1, vcc')
    a(f'v_mul_u32_u24 v{t1}, 5, v{t0}')
    a(f'v_sub_u32 v{t1}, v{col}, v{t1}')
    a(f'v_lshlrev_b32 v{t2}, 8, v{t0}')
    a(f'v_lshl_add_u32 v{t2}, v{t1}, 2, v{t2}')
    a(f'v_lshl_add_u32 v{t2}, v{g}, 6, v{t2}')
    a(f's_add_u32 s6, s{S_K}, {4092 - 512 - 48}')
    a(f'v_sub_u32 v{ad}, s6, v{t2}')
    a(f'v_and_b32 v{t2}, 1, v{t1}')
    a(f'v_cmp_eq_u32 s[84:85], 1, v{t2}')
    a(f'v_cmp_gt_u32 vcc, 10, v{col}')
    a(f'v_cmp_ne_u32 s[46:47], 4, v{t1}')
    a('s_and_b64 s[46:47], s[46:47], vcc')
    for r in range(4):
        a(f'v_mov_b32_dpp v{P0+r}, v{V[r]} row_shl:1 row_mask:0xf bank_mask:0xf bound_ctrl:1')
    for r in range(4):
        a(f'v_cndmask_b32 v{P0+r}, v{V[r]}, v{P0+r}, s[84:85]')
        a(f'v_cvt_pk_f16_f32 v{P0+r}, v{P0+r}, v{V[r]}')
    a('s_and_saveexec_b64 s[46:47], s[46:47]')
    for r in range(4):
        a(f'ds_write_b32 v{ad}, v{P0+r} offset:{16*(3-r)}')
    a('s_mov_b64 exec, s[46:47]')
    a(f's_branch {lend}')
    a.label(lo[2])
    products(2)
    a(f'v_lshrrev_b32 v{t0}, 1, v{col}')
    a(f'v_and_b32 v{t1}, 1, v{col}')
    a(f'v_lshlrev_b32 v{t2}, 8, v{t0}')
    a(f'v_lshl_add_u32 v{t2}, v{t1}, 3, v{t2}')
    a(f'v_lshl_add_u32 v{t2}, v{g}, 6, v{t2}')
    a(f's_add_u32 s6, s{S_K}, {4092 - 1024 - 48}')
    a(f'v_sub_u32 v{ad}, s6, v{t2}')
    a(f'v_cmp_eq_u32 s[84:85], 1, v{t1}')
    for r in range(4):
        a(f'v_mov_b32_dpp v{P0+r}, v{V[r]} row_shr:1 row_mask:0xf bank_mask:0xf bound_ctrl:1')
    for r in range(4):
        a(f'v_cndmask_b32 v{P0+r}, v{V[r]}, v{P0+r}, s[84:85]')
        a(f'v_cvt_pk_f16_f32 v{P0+r}, v{V[r]}, v{P0+r}')
        a(f'v_cvt_pk_f16_f32 v{P0+4+r}, v{V[r]}, v{V[r]}')
    a(f'v_add_u32 v{t0}, {48 + 4}, v{ad}')
    a(f's_sub_u32 s6, s{S_K}, {KREV_PAD}')
    a(f'v_mov_b32 v{t1}, s6')
    a('v_cmp_eq_u32 vcc, 0, v1')
    a(f'v_cndmask_b32 v{t0}, v{t0}, v{t1}, vcc')
    a(f'v_cmp_gt_u32 vcc, 8, v{col}')
    a('s_and_saveexec_b64 s[46:47], vcc')
    a(f'ds_write_b32 v{ad}, v{P0+4} offset:48')
    a(f'ds_write_b32 v{t0}, v{P0}')
    for r in range(1, 4):
        a(f'ds_write2_b32 v{ad}, v{P0+4+r}, v{P0+r} offset0:{4*(3-r)} offset1:{4*(3-r)+1}')
    a('s_mov_b64 exec, s[46:47]')
    a(f's_branch {lend}')
    a.label(lo[3])
    products(3)
    a(f'v_lshlrev_b32 v{t2}, 8, v{col}')
    a(f'v_lshl_add_u32 v{t2}, v{g}, 6, v{t2}')
    a(f's_add_u32 s6, s{S_K}, {4040 - 2048}')
    a(f'v_sub_u32 v{ad}, s6, v{t2}')
    for r in range(4):
        a(f'v_cvt_pk_f16_f32 v{P0+r}, v{V[r]}, v{V[r]}')
    a(f'v_cvt_pk_f16_f32 v{P0+4}, v{V[1]}, v{V[0]}')
    a(f'v_cvt_pk_f16_f32 v{P0+5}, v{V[3]}, v{V[2]}')
    a(f'v_add_u32 v{t0}, 60, v{ad}')
    a(f's_sub_u32 s6, s{S_K}, {KREV_PAD}')
    a(f'v_mov_b32 v{t1}, s6')
    a('v_cmp_eq_u32 vcc, 0, v1')
    a(f'v_cndmask_b32 v{t0}, v{t0}, v{t1}, vcc')
    a(f'v_cmp_gt_u32 vcc, 9, v{col}')
    a('s_and_saveexec_b64 s[46:47], vcc')
    seq = [3, 3, 3, 5, 2, 2, 2, 2, 1, 1, 1, 4, 0, 0, 0, 0]
    for k in range(0, 14, 2):
        a(f'ds_write2_b32 v{ad}, v{P0+seq[k]}, v{P0+seq[k+1]} offset0:{k} offset1:{k+1}')
    a(f'ds_write_b32 v{ad}, v{P0} offset:56')
    a(f'ds_write_b32 v{t0}, v{P0}')
    a('s_mov_b64 exec, s[46:47]')
    a.label(lend)
    lfin = a.new_label('task_fin')
    a(f's_cmp_lg_u32 s{S_RND}, 0')
    a(f's_cbranch_scc1 {lfin}')
    a('s_cmp_ge_u32 s2, 64')
    a(f's_cbranch_scc1 {lfin}')
    a('s_cmp_ge_u32 s5, 4')
    a(f's_cbranch_scc1 {lfin}')
    a(f's_mov_b32 s{S_RND}, 1')
    a(f's_mov_b32 s{S_SLOT}, 2')
    a(f's_branch {lloop}')
    a.label(lfin)

def ln2(a):
    T = 64
    row_stats(a, T)
    normalize(a, T)
    a('s_lshr_b32 s6, s5, 1')
    a('s_lshl_b32 s6, s6, 10')
    a(f's_add_u32 s6, s6, {LDS_Y}')
    a('s_and_b32 s7, s5, 1')
    a('s_lshl_b32 s7, s7, 3')
    a('v_lshrrev_b32 v2, 3, v1')
    a('v_add_u32 v2, s7, v2')
    a(f'v_and_b32 v3, 7, v{VQ}')
    a('v_xor_b32 v2, v2, v3')
    a(f'v_and_b32 v3, 3, v{VQ}')
    a('v_lshl_add_u32 v2, v3, 4, v2')
    a('v_lshl_add_u32 v2, v2, 4, s6')
    for m in range(9):
        a(f'v_lshrrev_b32 v3, 2, v{VQ+m}')
        a('v_lshl_add_u32 v3, v3, 12, v2')
        a(f'ds_write_b128 v3, v[{VX+4*m}:{VX+4*m+3}]')
```

```python
from common import *

GA   = 64
ACT  = [144, 160]
BIAS = 176
RING = 208
VYE, VYO, VL16 = 250, 251, 252
S_STR = 77

class Stream:
    def __init__(self, a, n): self.a, self.n, self.k = a, n, 0
    def load(self, slot):
        a = self.a
        a(f'buffer_load_dwordx4 v[{RING+4*slot}:{RING+4*slot+3}], v{VL16}, s[{SRD_WS}:{SRD_WS+3}], s{S_STR} offen offset:{1024*self.k} sc1')
        self.k += 1
        if self.k == 4: self.flush()
    def flush(self):
        if self.k:
            self.a(f's_add_u32 s{S_STR}, s{S_STR}, {1024*self.k}'); self.k = 0

def stream_start(a, n):
    a(f'v_lshlrev_b32 v{VL16}, 4, v1')
    a(f's_mul_i32 s{S_STR}, s4, {SLICE_B}')
    a('s_mul_i32 s6, s5, 144')
    a('s_max_u32 s7, s5, 4')
    a('s_sub_u32 s7, s7, 4')
    a('s_mul_i32 s7, s7, 36')
    a('s_add_u32 s6, s6, s7')
    a('s_lshl_b32 s6, s6, 10')
    a(f's_add_u32 s{S_STR}, s{S_STR}, s6')
    if WS_WP: a(f's_add_u32 s{S_STR}, s{S_STR}, {WS_WP}')
    st = Stream(a, n)
    for s in range(2*n): st.load(s)
    st.flush()

def l2_prefetch(a):
    a(f's_mul_i32 s6, s4, {SLICE_B}')
    a(f's_mul_i32 s7, s3, {SLICE_B // 32}')
    a('s_add_u32 s6, s6, s7')
    a('s_mul_i32 s7, s5, 5184')
    a('s_add_u32 s6, s6, s7')
    if WS_WP: a(f's_add_u32 s6, s6, {WS_WP}')
    a('v_lshlrev_b32 v2, 6, v1')
    a(f'buffer_load_dword v255, v2, s[{SRD_WS}:{SRD_WS+3}], s6 offen sc1')
    a('s_add_u32 s6, s6, 4096')
    a('v_cmp_gt_u32 vcc, 17, v1')
    a('s_and_saveexec_b64 s[46:47], vcc')
    a(f'buffer_load_dword v255, v2, s[{SRD_WS}:{SRD_WS+3}], s6 offen sc1')
    a('s_mov_b64 exec, s[46:47]')

def body(a, n, first_c=None, loads=True, last=False):
    st = Stream(a, n)
    for b in (0, 1):
        va = VYO if b == 0 else VYE
        for rt in range(4):
            if last and b == 1: break
            d = ACT[b ^ 1] + 4*rt
            a(f'ds_read_b128 v[{d}:{d+3}], v{va} offset:{((b+1)*4 + rt)*1024}')
        a('s_waitcnt lgkmcnt(0)' if (last and b == 1) else 's_waitcnt lgkmcnt(4)')
        for t in range(n):
            if loads: w = 2*n - 1
            else: w = (2*n - 1 - t) if b == 0 else (n - 1 - t)
            a(f's_waitcnt vmcnt({w})')
            slot = b*n + t
            for rt in range(4):
                ac = GA + (4*t + rt)*4
                if first_c is not None and b == 0:
                    C = f'v[{BIAS+4*t}:{BIAS+4*t+3}]' if first_c == 'bias' else '0'
                else:
                    C = f'v[{ac}:{ac+3}]'
                a(f'v_mfma_f32_16x16x32_bf16 v[{ac}:{ac+3}], v[{RING+4*slot}:{RING+4*slot+3}], v[{ACT[b]+4*rt}:{ACT[b]+4*rt+3}], {C}')
            if loads: st.load(slot)
    st.flush()
    if not last:
        a(f'v_add_u32 v{VYE}, 8192, v{VYE}')
        a(f'v_add_u32 v{VYO}, 8192, v{VYO}')

def first_act(a):
    for rt in range(4):
        d = ACT[0] + 4*rt
        a(f'ds_read_b128 v[{d}:{d+3}], v{VYE} offset:{rt*1024}')

def gemm1(a, n):
    a('v_and_b32 v2, 15, v1')
    a('v_lshrrev_b32 v3, 4, v1')
    a('v_xor_b32 v2, v2, v3')
    a('v_lshl_add_u32 v4, v3, 4, v2')
    a(f'v_lshlrev_b32 v{VYE}, 4, v4')
    a('v_xor_b32 v2, 4, v2')
    a('v_lshl_add_u32 v4, v3, 4, v2')
    a(f'v_lshlrev_b32 v{VYO}, 4, v4')
    if LDS_Y:
        a(f'v_add_u32 v{VYE}, {LDS_Y}, v{VYE}'); a(f'v_add_u32 v{VYO}, {LDS_Y}, v{VYO}')
    a('v_lshlrev_b32 v3, 4, v3')
    a('s_lshl_b32 s6, s5, 8')
    a(f's_add_u32 s6, s6, {LDS_B1}')
    a('v_add_u32 v4, s6, v3')
    for t in range(4):
        a(f'ds_read_b128 v[{BIAS+4*t}:{BIAS+4*t+3}], v4 offset:{64*t}')
    if n == 5:
        a('s_sub_u32 s6, s5, 4')
        a('s_lshl_b32 s6, s6, 6')
        a(f's_add_u32 s6, s6, {LDS_B1 + 32*64}')
        a('v_add_u32 v4, s6, v3')
        a(f'ds_read_b128 v[{BIAS+16}:{BIAS+19}], v4')
    first_act(a)
    body(a, n, first_c='bias')
    a('s_mov_b32 s78, 8')
    lp = a.new_label('g1')
    a.label(lp)
    body(a, n)
    a('s_sub_u32 s78, s78, 1')
    a('s_cmp_lg_u32 s78, 0')
    a(f's_cbranch_scc1 {lp}')

C0 = -2.0 * 0.7978845608028654 * 1.4426950408889634
C1 = C0 * 0.044715

def gelu_quad(a, ac, T, dst):
    for r in range(4): a(f'v_mul_f32 v{T+r}, v{ac+r}, v{ac+r}')
    for r in range(4): a(f'v_fma_f32 v{T+r}, v{T+r}, s79, v{T+4}')
    for r in range(4): a(f'v_mul_f32 v{T+r}, v{ac+r}, v{T+r}')
    for r in range(4): a(f'v_exp_f32 v{T+r}, v{T+r}')
    for r in range(4): a(f'v_add_f32 v{T+r}, 1.0, v{T+r}')
    for r in range(4): a(f'v_rcp_f32 v{T+r}, v{T+r}')
    for r in range(4): a(f'v_mul_f32 v{ac+r}, v{ac+r}, v{T+r}')
    a(f'v_cvt_pk_bf16_f32 v{dst}, v{ac}, v{ac+1}')
    a(f'v_cvt_pk_bf16_f32 v{dst+1}, v{ac+2}, v{ac+3}')

def gelu(a, n):
    T = 176; Q = 184
    a(f's_mov_b32 s79, {fhex(C1)}')
    a(f'v_mov_b32 v{T+4}, {fhex(C0)}')
    lp = a.new_label('cw'); ld = a.new_label('cw_done')
    a('s_cmp_lt_u32 s2, 64')
    a('s_cselect_b32 s7, 8, 4')
    a(f'v_mov_b32 v2, {LDS_CNT}')
    a('s_mov_b32 s6, 0')
    a.label(lp)
    a('ds_read_b32 v3, v2')
    a('s_add_u32 s6, s6, 1')
    a('s_cmp_gt_u32 s6, 4000000')
    a(f's_cbranch_scc1 {ld}')
    a('s_waitcnt lgkmcnt(0)')
    a('v_readfirstlane_b32 s8, v3')
    a('s_cmp_lt_u32 s8, s7')
    a(f's_cbranch_scc1 {lp}')
    a.label(ld)
    a('s_lshl_b32 s6, s5, 13')
    a(f's_add_u32 s6, s6, {LDS_H}')
    a(f'v_add_u32 v2, s6, v{VL16}')
    k = 0
    for tp in range(2):
        for rt in range(4):
            q = Q + 4*(k % 2); k += 1
            gelu_quad(a, GA + (4*(2*tp) + rt)*4, T, q)
            gelu_quad(a, GA + (4*(2*tp+1) + rt)*4, T, q + 2)
            a(f'ds_write_b128 v2, v[{q}:{q+3}] offset:{(4*tp + rt)*1024}')
    if n == 5:
        a('s_sub_u32 s6, s5, 4')
        a('s_lshr_b32 s7, s6, 1')
        a('s_lshl_b32 s7, s7, 12')
        a('s_and_b32 s6, s6, 1')
        a('s_lshl_b32 s6, s6, 3')
        a('s_add_u32 s6, s6, s7')
        a(f's_add_u32 s6, s6, {LDS_H + 16*4096}')
        a(f'v_add_u32 v2, s6, v{VL16}')
        for rt in range(4):
            q = Q + 4*(k % 2); k += 1
            gelu_quad(a, GA + (16 + rt)*4, T, q)
            a(f'ds_write_b64 v2, v[{q}:{q+1}] offset:{rt*1024}')

def gemm2(a, n):
    a(f'v_add_u32 v{VYE}, {LDS_H}, v{VL16}')
    a(f'v_add_u32 v{VYO}, {LDS_H}, v{VL16}')
    first_act(a)
    body(a, n, first_c='0')
    a('s_mov_b32 s78, 7')
    lp = a.new_label('g2')
    a.label(lp)
    body(a, n)
    a('s_sub_u32 s78, s78, 1')
    a('s_cmp_lg_u32 s78, 0')
    a(f's_cbranch_scc1 {lp}')
    body(a, n, loads=False, last=True)

S_TS, S_PB = 72, 73

def publish(a, n):
    a('s_mul_i32 s72, s4, 9')
    a(f's_lshr_b32 s{S_TS}, s72, 1')
    a(f's_lshl_b32 s{S_PB}, s2, 0')
    a(f's_mul_i32 s{S_PB}, s{S_PB}, {72*1024}')
    a(f's_add_u32 s{S_PB}, s{S_PB}, {WS_PART}')
    Q = 144; k = 0
    for t in range(n):
        if t < 4:
            a(f's_add_u32 s6, s{S_TS}, s5')
            if t: a(f's_add_u32 s6, s6, {8*t}')
        else:
            a(f's_add_u32 s6, s{S_TS}, s5')
            a('s_add_u32 s6, s6, 28')
        a('s_sub_u32 s7, s6, 36')
        a('s_min_u32 s6, s6, s7')
        a('s_lshl_b32 s6, s6, 11')
        a(f's_add_u32 s6, s6, s{S_PB}')
        for pi in range(2):
            lskip = None
            if t == 0:
                lskip = a.new_label('own'); lst = a.new_label('st')
                a('s_cmp_gt_u32 s5, 4')
                a(f's_cbranch_scc1 {lst}')
                a(f's_cmp_lg_u32 s5, {0 if pi == 0 else 4}')
                a(f's_cbranch_scc1 {lskip}')
                a('s_and_b32 s7, s4, 1')
                a(f's_cmp_eq_u32 s7, {0 if pi == 0 else 1}')
                a(f's_cbranch_scc1 {lskip}')
                a.label(lst)
            q = Q + 4*(k % 4); k += 1
            for h in range(2):
                ac = GA + (4*t + 2*pi + h)*4
                a(f'v_cvt_pk_bf16_f32 v{q+2*h}, v{ac}, v{ac+1}')
                a(f'v_cvt_pk_bf16_f32 v{q+2*h+1}, v{ac+2}, v{ac+3}')
            a(f'buffer_store_dwordx4 v[{q}:{q+3}], v{VL16}, s[{SRD_WS}:{SRD_WS+3}], s6 offen offset:{1024*pi} sc1')
            if lskip: a.label(lskip)

def arrive(a, off_code):
    l = a.new_label('arr')
    a('s_cmp_lg_u32 s5, 0')
    a(f's_cbranch_scc1 {l}')
    off_code()
    a('v_mov_b32 v2, 0')
    a('v_mov_b32 v3, 1')
    a('s_mov_b64 s[46:47], exec')
    a('s_mov_b64 exec, 1')
    a(f'buffer_atomic_add v3, v2, s[{SRD_WS}:{SRD_WS+3}], s6 offen sc1')
    a('s_mov_b64 exec, s[46:47]')
    a.label(l)

def arrive_b(a):
    def off():
        a('s_and_b32 s6, s2, 7'); a('s_lshl_b32 s6, s6, 7'); a(f's_add_u32 s6, s6, {WS_CNT + 4096}')
    arrive(a, off)

def arrive_c(a):
    def off():
        a('s_lshl_b32 s6, s3, 7'); a(f's_add_u32 s6, s6, {WS_CNT}')
    arrive(a, off)

def wait_bc(a, spin_max):
    l = a.new_label('waitC'); lp = a.new_label('pollC')
    a('s_cmp_lg_u32 s5, 0')
    a(f's_cbranch_scc1 {l}')
    a('s_lshl_b32 s6, s3, 7')
    a('v_mov_b32 v2, s6')
    a('v_lshlrev_b32 v3, 7, v1')
    a('v_add_u32 v3, 4096, v3')
    a('v_cmp_gt_u32 vcc, 8, v1')
    a('v_cndmask_b32 v2, v2, v3, vcc')
    a('v_mov_b32 v4, 8')
    a('v_mov_b32 v5, 32')
    a('v_cndmask_b32 v4, v4, v5, vcc')
    a(f's_mov_b32 s7, {WS_CNT}')
    a('s_mov_b32 s6, 0')
    a.label(lp)
    a(f'buffer_load_dword v3, v2, s[{SRD_WS}:{SRD_WS+3}], s7 offen sc1')
    a('s_add_u32 s6, s6, 1')
    a(f's_cmp_gt_u32 s6, {spin_max}')
    a(f's_cbranch_scc1 {l}')
    a('s_waitcnt vmcnt(0)')
    a('v_cmp_ne_u32 vcc, v4, v3')
    a('s_nop 4')
    a(f's_cbranch_vccnz {lp}')
    a.label(l)

XF = 144
SF = 152
PF = 168

def final_x_loads(a):
    a(f's_add_u32 s74, s{S_TS}, s5')
    a('v_and_b32 v2, 15, v1')
    a('v_lshrrev_b32 v3, 4, v1')
    a('s_lshl_b32 s6, s3, 6')
    a('v_add_u32 v4, s6, v2')
    a('v_mul_u32_u24 v4, 1152, v4')
    a('s_lshl_b32 s6, s74, 5')
    a('v_lshl_add_u32 v4, v3, 3, v4')
    a('v_add_u32 v253, s6, v4')
    for rt in range(4):
        a(f's_mov_b32 s6, {rt*16*1152}')
        a(f'buffer_load_dwordx2 v[{XF+2*rt}:{XF+2*rt+1}], v253, s[{SRD_X}:{SRD_X+3}], s6 offen')

def final(a):
    a('s_and_b32 s75, s4, 1')
    lab = [a.new_label('fin_ld'), a.new_label('fin_ld')]
    def skip_if_not_owned(pi, lbl):
        ln = a.new_label('fin_own')
        a(f's_cmp_lg_u32 s5, {0 if pi == 0 else 4}')
        a(f's_cbranch_scc1 {ln}')
        a(f's_cmp_eq_u32 s75, {1 if pi == 0 else 0}')
        a(f's_cbranch_scc1 {lbl}')
        a.label(ln)
    a('v_and_b32 v2, 15, v1')
    a('v_lshrrev_b32 v3, 4, v1')
    a('v_lshlrev_b32 v3, 14, v3')
    a('v_lshl_add_u32 v254, v2, 1, v3')
    a('s_lshl_b32 s6, s74, 16')
    a('s_lshl_b32 s7, s3, 7')
    a('s_add_u32 s6, s6, s7')
    a(f's_add_u32 s76, s6, {WS_ST}')
    a(f's_mul_i32 s6, s3, {8*72*1024}')
    a('s_lshl_b32 s7, s74, 11')
    a('s_add_u32 s6, s6, s7')
    a(f's_add_u32 s78, s6, {WS_PART}')
    for pi in range(2):
        skip_if_not_owned(pi, lab[pi])
        for k in range(1, 8):
            a(f's_add_u32 s6, s4, {k}')
            a('s_and_b32 s6, s6, 7')
            a(f's_mul_i32 s6, s6, {72*1024}')
            a('s_add_u32 s6, s6, s78')
            d = PF + ((k-1)*2 + pi)*4
            a(f'buffer_load_dwordx4 v[{d}:{d+3}], v{VL16}, s[{SRD_WS}:{SRD_WS+3}], s6 offen offset:{1024*pi} sc1')
        for h in range(2):
            rt = 2*pi + h
            for r in range(4):
                a(f's_add_u32 s6, s76, {r*4096}')
                a(f'buffer_load_ushort v{SF+4*rt+r}, v254, s[{SRD_WS}:{SRD_WS+3}], s6 offen offset:{32*rt} sc1')
        a.label(lab[pi])
    a('v_lshrrev_b32 v3, 4, v1')
    a('s_lshl_b32 s6, s74, 6')
    a(f's_add_u32 s6, s6, {LDS_B2}')
    a('v_lshl_add_u32 v3, v3, 4, s6')
    a('ds_read_b128 v[4:7], v3')
    a('s_waitcnt vmcnt(0) lgkmcnt(0)')
    T = 224
    for pi in range(2):
        l = a.new_label('fin_c')
        skip_if_not_owned(pi, l)
        for h in range(2):
            rt = 2*pi + h
            ac = GA + rt*4
            for k in range(1, 8):
                d = PF + ((k-1)*2 + pi)*4 + 2*h
                a(f'v_lshlrev_b32 v{T}, 16, v{d}')
                a(f'v_and_b32 v{T+1}, 0xffff0000, v{d}')
                a(f'v_lshlrev_b32 v{T+2}, 16, v{d+1}')
                a(f'v_and_b32 v{T+3}, 0xffff0000, v{d+1}')
                for r in range(4): a(f'v_add_f32 v{ac+r}, v{ac+r}, v{T+r}')
            for r in range(4): a(f'v_add_f32 v{ac+r}, v{ac+r}, v{4+r}')
            for r in range(4): a(f'v_mul_f32 v{T+r}, {fhex(-1.4426950408889634)}, v{ac+r}')
            for r in range(4): a(f'v_exp_f32 v{T+r}, v{T+r}')
            for r in range(4): a(f'v_add_f32 v{T+r}, 1.0, v{T+r}')
            for r in range(4): a(f'v_rcp_f32 v{T+r}, v{T+r}')
            for r in range(4): a(f'v_mul_f32 v{ac+r}, v{ac+r}, v{T+r}')
            for r in range(4): a(f'v_lshlrev_b32 v{T+r}, 16, v{SF+4*rt+r}')
            x = XF + 2*rt
            a(f'v_lshlrev_b32 v{T+4}, 16, v{x}')
            a(f'v_and_b32 v{T+5}, 0xffff0000, v{x}')
            a(f'v_lshlrev_b32 v{T+6}, 16, v{x+1}')
            a(f'v_and_b32 v{T+7}, 0xffff0000, v{x+1}')
            for r in range(4): a(f'v_fma_f32 v{ac+r}, v{ac+r}, v{T+r}, v{T+4+r}')
            a(f'v_cvt_pk_bf16_f32 v{T+8}, v{ac}, v{ac+1}')
            a(f'v_cvt_pk_bf16_f32 v{T+9}, v{ac+2}, v{ac+3}')
            a(f's_mov_b32 s6, {rt*16*1152}')
            a(f'buffer_store_dwordx2 v[{T+8}:{T+9}], v253, s[{SRD_OUT}:{SRD_OUT+3}], s6 offen')
        a.label(l)
```

```python
from common import *

V_TID, V_LANE = 0, 1
VX   = 8
VQ   = 44
VP   = 54
VF   = 64
S_U0, S_U1 = 72, 76
S_HASU1 = 80
S_HASK = 81
S_CH = 82

def entry(a):
    a(f's_cmp_ge_u32 s2, 256')
    a(f's_cbranch_scc1 L_end')
    a('s_load_dwordx16 s[16:31], s[0:1], 0')
    a('s_load_dwordx8 s[32:39], s[0:1], 64')
    a('s_load_dwordx4 s[40:43], s[0:1], 96')
    a('s_load_dwordx2 s[44:45], s[0:1], 112')
    a(f'v_and_b32 v{V_LANE}, 63, v0')
    a('v_lshrrev_b32 v2, 6, v0')
    a(f'v_readfirstlane_b32 s{S_WV}, v2')
    a(f's_and_b32 s{S_J}, s2, 7')
    a(f's_lshr_b32 s{S_I}, s2, 3')
    a('s_waitcnt lgkmcnt(0)')
    srd(a, SRD_X, P_X, L * D * 2)
    srd(a, SRD_WS, P_WS, WS_SIZE)
    srd(a, SRD_W1, P_W1, D * F * 2)
    srd(a, SRD_W2, P_W2, D * F * 2)
    srd(a, SRD_OUT, P_OUT, L * D * 2)
    srd(a, SRD_DBG, P_DBG, 256)

def unit_decode(a, su, S):
    a(f's_cmp_ge_u32 s{su}, 1296')
    a(f's_cselect_b32 s{S}, 1, 0')
    a(f's_mul_i32 s6, s{S}, 1296')
    a(f's_sub_u32 s7, s{su}, s6')
    sdiv(a, S + 1, 7, 162, 1295)
    a(f's_mul_i32 s6, s{S+1}, 162')
    a(f's_sub_u32 s7, s7, s6')
    sdiv(a, S + 2, 7, 9, 161)
    a(f's_mul_i32 s6, s{S+2}, 9')
    a(f's_sub_u32 s{S+3}, s7, s6')

def unit_issue(a, S, stg_sbase):
    lw2 = a.new_label('rp_w2'); ld = a.new_label('rp_done')
    a('v_lshrrev_b32 v2, 3, v1')
    a('v_and_b32 v3, 7, v1')
    a('v_lshlrev_b32 v3, 4, v3')
    a(f's_cmp_lg_u32 s{S}, 0')
    a(f's_cbranch_scc1 {lw2}')
    a(f's_mul_i32 s6, s{S+2}, {32 * 9216}')
    a(f's_mul_i32 s7, s{S+1}, 1152')
    a('s_add_u32 s6, s6, s7')
    a(f's_lshl_b32 s7, s{S+3}, 7')
    a('s_add_u32 s6, s6, s7')
    a('v_mul_u32_u24 v2, 9216, v2')
    a('v_add_u32 v2, v2, v3')
    for q in range(4):
        a(f's_add_u32 m0, s{stg_sbase}, {q * 1024}')
        a(f'buffer_load_dwordx4 v2, s[{SRD_W1}:{SRD_W1+3}], s6 offen lds')
        if q < 3: a(f's_add_u32 s6, s6, {8 * 9216}')
    a(f's_branch {ld}')
    a.label(lw2)
    a(f's_mul_i32 s6, s{S+1}, 576')
    a(f's_lshl_b32 s7, s{S+2}, 5')
    a('s_add_u32 s6, s6, s7')
    a('s_mul_i32 s6, s6, 1152')
    a(f's_lshl_b32 s7, s{S+3}, 7')
    a('s_add_u32 s6, s6, s7')
    a('v_mul_u32_u24 v2, 1152, v2')
    a('v_add_u32 v2, v2, v3')
    for q in range(4):
        a(f's_add_u32 m0, s{stg_sbase}, {q * 1024}')
        a(f'buffer_load_dwordx4 v2, s[{SRD_W2}:{SRD_W2+3}], s6 offen lds')
        if q < 3: a(f's_add_u32 s6, s6, {8 * 1152}')
    a.label(ld)

def unit_finish(a, S, stg_sbase):
    a(f's_cmp_lg_u32 s{S}, 0')
    a('s_cselect_b32 s6, 9, 10')
    a('s_cselect_b32 s7, 11, 9')
    a('s_lshl_b32 s6, 1, s6')
    a('s_lshl_b32 s7, 1, s7')
    a('v_lshrrev_b32 v2, 4, v1')
    a('v_mul_lo_u32 v2, v2, s6')
    a('v_bfe_u32 v3, v1, 2, 2')
    a('v_lshl_add_u32 v2, v3, 7, v2')
    a('v_and_b32 v3, 3, v1')
    a('v_lshl_add_u32 v2, v3, 3, v2')
    a(f'v_add_u32 v4, s{stg_sbase}, v2')
    a('v_add_u32 v5, s7, v4')
    for c in range(4):
        a(f'ds_read_b64_tr_b16 v[{VF+4*c}:{VF+4*c+1}], v4 offset:{32*c}')
        a(f'ds_read_b64_tr_b16 v[{VF+4*c+2}:{VF+4*c+3}], v5 offset:{32*c}')
    a('v_lshlrev_b32 v3, 4, v1')
    a(f's_mul_i32 s12, s{S+1}, 9')
    a('s_lshr_b32 s12, s12, 1')
    a(f's_mul_i32 s13, s{S}, 18')
    a(f's_add_u32 s13, s13, s{S+2}')
    a(f's_mul_i32 s15, s{S+1}, 1296')
    for c in range(4):
        lm1 = a.new_label('rp_m1'); lhi = a.new_label('rp_hi'); lj = a.new_label('rp_j')
        a(f's_lshl_b32 s8, s{S+3}, 2')
        if c: a(f's_add_u32 s8, s8, {c}')
        a(f's_cmp_lg_u32 s{S}, 0')
        a(f's_cbranch_scc1 {lm1}')
        a('s_lshr_b32 s9, s8, 2')
        a('s_and_b32 s10, s8, 3')
        a(f's_branch {lhi}')
        a.label(lm1)
        a('s_add_u32 s8, s8, 36')
        a('s_sub_u32 s8, s8, s12')
        a('s_sub_u32 s9, s8, 36')
        a('s_min_u32 s8, s8, s9')
        a('s_and_b32 s9, s8, 7')
        a('s_lshr_b32 s10, s8, 3')
        a.label(lhi)
        a('s_cmp_ge_u32 s8, 32')
        a(f's_cbranch_scc0 {lj}')
        a('s_sub_u32 s9, s8, 28')
        a('s_mov_b32 s10, 4')
        a.label(lj)
        a('s_cmp_ge_u32 s9, 4')
        a('s_cselect_b32 s11, 5, 4')
        a('s_mul_i32 s11, s11, s13')
        a('s_add_u32 s11, s11, s10')
        a('s_mul_i32 s14, s9, 144')
        a('s_max_u32 s9, s9, 4')
        a('s_sub_u32 s9, s9, 4')
        a('s_mul_i32 s9, s9, 36')
        a('s_add_u32 s14, s14, s9')
        a('s_add_u32 s14, s14, s11')
        a('s_add_u32 s14, s14, s15')
        a('s_lshl_b32 s14, s14, 10')
        if c == 0: a('s_waitcnt lgkmcnt(0)')
        a(f'buffer_store_dwordx4 v[{VF+4*c}:{VF+4*c+3}], v3, s[{SRD_WS}:{SRD_WS+3}], s14 offen sc1')

def first_loads(a):
    a('s_lshl_b32 s6, s3, 6')
    a('s_lshl_b32 s7, s5, 3')
    a('s_add_u32 s6, s6, s7')
    a('s_mul_i32 s6, s6, 1152')
    a('s_mul_i32 s7, s4, 9')
    a('v_lshrrev_b32 v2, 3, v1')
    a('v_mul_u32_u24 v2, 1152, v2')
    a('v_add_u32 v2, s6, v2')
    a('v_and_b32 v3, 7, v1')
    a('v_add_u32 v3, s7, v3')
    for m in range(9):
        if m: a(f'v_add_u32 v4, {8*m}, v3')
        src = 'v4' if m else 'v3'
        a(f'v_add_u32 v5, 0xffffffb8, {src}')
        a(f'v_min_u32 v{VQ+m}, {src}, v5')
        a(f'v_lshl_add_u32 v5, v{VQ+m}, 4, v2')
        a(f'buffer_load_dwordx4 v[{VX+4*m}:{VX+4*m+3}], v5, s[{SRD_X}:{SRD_X+3}], 0 offen')
    a('s_lshl_b32 s9, s2, 3')
    a('s_add_u32 s9, s9, s5')
    unit_decode(a, 9, S_U0)
    a('s_lshl_b32 s10, s5, 12')
    a(f's_add_u32 s10, s10, {LDS_STG}')
    unit_issue(a, S_U0, 10)
    a('s_lshl_b32 s9, s5, 8')
    a('s_add_u32 s9, s9, s2')
    a('s_add_u32 s9, s9, 2048')
    a('s_cmp_lt_u32 s9, 2592')
    a(f's_cselect_b32 s{S_HASU1}, 1, 0')
    lno = a.new_label('no_u1')
    a(f's_cbranch_scc0 {lno}')
    unit_decode(a, 9, S_U1)
    a('s_lshl_b32 s10, s5, 12')
    a(f's_add_u32 s10, s10, {LDS_STG2}')
    unit_issue(a, S_U1, 10)
    a.label(lno)
    a('s_mul_i32 s6, s4, 1152')
    a('v_lshlrev_b32 v2, 2, v0')
    a('v_add_u32 v3, s6, v2')
    a('v_cmp_gt_u32 vcc, 288, v0')
    a('s_and_saveexec_b64 s[46:47], vcc')
    lnb = a.new_label('no_b')
    a(f's_cbranch_execz {lnb}')
    a(f'global_load_dword v62, v3, s[{P_B1}:{P_B1+1}]')
    a(f'global_load_dword v63, v2, s[{P_B2}:{P_B2+1}]')
    a.label(lnb)
    a('s_mov_b64 exec, s[46:47]')
    a('s_lshr_b32 s6, s5, 1')
    a('s_lshl_b32 s6, s6, 8')
    a(f's_add_u32 s{S_CH}, s6, s2')
    a(f's_cmp_lt_u32 s{S_CH}, 576')
    a(f's_cselect_b32 s{S_HASK}, 1, 0')
    lnk = a.new_label('no_k')
    a(f's_cbranch_scc0 {lnk}')
    a('s_and_b32 s6, s5, 1')
    a('s_lshl_b32 s6, s6, 7')
    a(f's_lshl_b32 s7, s{S_CH}, 8')
    a('s_add_u32 s8, s7, s6')
    a('s_xor_b32 s6, s6, 128')
    a('s_add_u32 s9, s7, s6')
    a('v_lshlrev_b32 v2, 1, v1')
    a('v_add_u32 v3, s9, v2')
    a('v_add_u32 v2, s8, v2')
    a(f's_lshl_b32 s7, s{S_CH}, 1')
    a('v_mov_b32 v4, s7')
    a(f'global_load_ushort v{VP+0}, v2, s[{P_LOGA}:{P_LOGA+1}]')
    a(f'global_load_ushort v{VP+1}, v2, s[{P_AIM}:{P_AIM+1}]')
    a(f'global_load_ushort v{VP+2}, v2, s[{P_CRE}:{P_CRE+1}]')
    a(f'global_load_ushort v{VP+3}, v2, s[{P_CIM}:{P_CIM+1}]')
    a(f'global_load_ushort v{VP+4}, v3, s[{P_CRE}:{P_CRE+1}]')
    a(f'global_load_ushort v{VP+5}, v3, s[{P_CIM}:{P_CIM+1}]')
    a(f'global_load_ushort v{VP+6}, v4, s[{P_LOGDT}:{P_LOGDT+1}]')
    a(f'global_load_ushort v{VP+7}, v4, s[{P_DSK}:{P_DSK+1}]')
    a.label(lnk)

def repack(a):
    a('s_waitcnt vmcnt(0)')
    a('s_lshl_b32 s46, s5, 12')
    a(f's_add_u32 s46, s46, {LDS_STG}')
    unit_finish(a, S_U0, 46)
    lno = a.new_label('no_u1b')
    a(f's_cmp_eq_u32 s{S_HASU1}, 0')
    a(f's_cbranch_scc1 {lno}')
    a('s_lshl_b32 s46, s5, 12')
    a(f's_add_u32 s46, s46, {LDS_STG2}')
    unit_finish(a, S_U1, 46)
    a.label(lno)

def bias_stage(a):
    a('v_lshlrev_b32 v2, 3, v0')
    a(f'v_add_u32 v2, {LDS_B1}, v2')
    a('v_lshlrev_b32 v4, 16, v62')
    a('v_and_b32 v5, 0xffff0000, v62')
    a('v_lshlrev_b32 v6, 16, v63')
    a('v_and_b32 v7, 0xffff0000, v63')
    a('v_cmp_gt_u32 vcc, 288, v0')
    a('s_and_saveexec_b64 s[46:47], vcc')
    a('ds_write_b64 v2, v[4:5]')
    a('ds_write_b64 v2, v[6:7] offset:2304')
    a('s_mov_b64 exec, s[46:47]')

def bf16r(a, dst, src, tmp=None):
    a(f'v_cvt_pk_bf16_f32 v{dst}, v{src}, v{src}')
    a(f'v_and_b32 v{dst}, 0xffff0000, v{dst}')

def row_stats(a, T):
    s0, s1, q0, q1 = T + 2, T + 3, T + 4, T + 5
    a('s_mov_b32 s6, 0x3f803f80')
    for k in range(36):
        s = s0 if k % 2 == 0 else s1
        q = q0 if k % 2 == 0 else q1
        if k < 2:
            a(f'v_dot2_f32_bf16 v{s}, v{VX+k}, s6, 0')
            a(f'v_dot2_f32_bf16 v{q}, v{VX+k}, v{VX+k}, 0')
        else:
            a(f'v_dot2_f32_bf16 v{s}, v{VX+k}, s6, v{s}')
            a(f'v_dot2_f32_bf16 v{q}, v{VX+k}, v{VX+k}, v{q}')
    a(f'v_add_f32 v{s0}, v{s0}, v{s1}')
    a(f'v_add_f32 v{q0}, v{q0}, v{q1}')
    for dpp in ('quad_perm:[1,0,3,2]', 'quad_perm:[2,3,0,1]', 'row_half_mirror'):
        a(f'v_add_f32_dpp v{s0}, v{s0}, v{s0} {dpp} row_mask:0xf bank_mask:0xf')
        a(f'v_add_f32_dpp v{q0}, v{q0}, v{q0} {dpp} row_mask:0xf bank_mask:0xf')
    m, v, t = T + 6, T + 7, T + 8
    a(f'v_mul_f32 v{m}, {fhex(1/576)}, v{s0}')
    a(f'v_mul_f32 v{v}, {fhex(1/576)}, v{q0}')
    a(f'v_fma_f32 v{v}, -v{m}, v{m}, v{v}')
    a(f'v_max_f32 v{v}, 0, v{v}')
    bf16r(a, m, m)
    bf16r(a, v, v)
    a(f'v_add_f32 v{v}, {fhex(1e-5)}, v{v}')
    bf16r(a, v, v)
    a(f'v_sqrt_f32 v{v}, v{v}')
    bf16r(a, v, v)
    a(f'v_rcp_f32 v{T}, v{v}')
    a(f'v_mul_f32 v{T+1}, v{m}, v{T}')
    a(f'v_sub_f32 v{T+1}, 0, v{T+1}')

def normalize(a, T):
    rs, nb = T, T + 1
    for k in range(36):
        lo, hi = T + 2 + 2 * (k % 2), T + 3 + 2 * (k % 2)
        a(f'v_lshlrev_b32 v{lo}, 16, v{VX+k}')
        a(f'v_and_b32 v{hi}, 0xffff0000, v{VX+k}')
        a(f'v_fma_f32 v{lo}, v{lo}, v{rs}, v{nb}')
        a(f'v_fma_f32 v{hi}, v{hi}, v{rs}, v{nb}')
        a(f'v_cvt_pk_bf16_f32 v{VX+k}, v{lo}, v{hi}')

def ln1(a):
    T = 64
    row_stats(a, T)
    normalize(a, T)

def xnt_tile(a):
    T = 64
    for k in range(8):
        a(f'v_lshlrev_b32 v{T+8}, 16, v{VX+k}')
        a(f'v_and_b32 v{T+9}, 0xffff0000, v{VX+k}')
        a(f'v_cvt_pk_f16_f32 v{T+k}, v{T+8}, v{T+9}')
    a('v_and_b32 v2, 7, v1')
    a('v_lshrrev_b32 v3, 3, v1')
    a('v_xor_b32 v4, s5, v2')
    a('v_lshlrev_b32 v4, 4, v4')
    a('v_lshl_add_u32 v4, v2, 10, v4')
    a('v_lshl_add_u32 v4, v3, 1, v4')
    a(f'v_add_u32 v4, {LDS_XT}, v4')
    for d in range(4):
        a(f'ds_write_b16 v4, v{T+d} offset:{128*(2*d)}')
        a(f'ds_write_b16_d16_hi v4, v{T+d} offset:{128*(2*d+1)}')
    a('s_lshl_b32 s6, s5, 4')
    a(f's_add_u32 s6, s6, {LDS_XT + 8192}')
    a('v_lshl_add_u32 v4, v3, 1, s6')
    a('v_cmp_eq_u32 vcc, 0, v2')
    a('s_and_saveexec_b64 s[46:47], vcc')
    for d in range(4):
        a(f'ds_write_b16 v4, v{T+4+d} offset:{128*(2*d)}')
        a(f'ds_write_b16_d16_hi v4, v{T+4+d} offset:{128*(2*d+1)}')
    a('s_mov_b64 exec, s[46:47]')

def xnt_publish(a):
    T = 64
    def one(vU):
        a(f'v_lshrrev_b32 v3, 3, v{vU}')
        a(f'v_and_b32 v4, 7, v{vU}')
        a('v_bfe_u32 v5, v3, 3, 3')
        a('v_xor_b32 v5, v5, v4')
        a('v_lshlrev_b32 v5, 4, v5')
        a('v_lshl_add_u32 v5, v3, 7, v5')
        a(f'v_add_u32 v5, {LDS_XT}, v5')
        a(f'ds_read_b128 v[{T}:{T+3}], v5')
        a('v_lshlrev_b32 v3, 12, v3')
        a('v_lshl_add_u32 v3, v4, 4, v3')
        a('s_waitcnt lgkmcnt(0)')
        a(f'buffer_store_dwordx4 v[{T}:{T+3}], v3, s[{SRD_WS}:{SRD_WS+3}], s6 offen sc1')
    a('s_mul_i32 s6, s4, 72')
    a('s_lshl_b32 s6, s6, 12')
    a('s_lshl_b32 s7, s3, 7')
    a('s_add_u32 s6, s6, s7')
    a(f's_add_u32 s6, s6, {WS_XNT}')
    one(0)
    lno = a.new_label('xp_no')
    a('s_cmp_lg_u32 s5, 0')
    a(f's_cbranch_scc1 {lno}')
    a('v_add_u32 v2, 512, v1')
    T += 4
    one(2)
    a('v_mov_b32 v2, 0')
    a('s_mov_b64 s[46:47], exec')
    a('s_mov_b64 exec, 1')
    l1 = a.new_label('xp_c'); l2 = a.new_label('xp_b')
    a('s_cmp_lg_u32 s4, 0')
    a(f's_cbranch_scc1 {l1}')
    a('s_lshl_b32 s6, s3, 7')
    a(f's_add_u32 s6, s6, {WS_CNT}')
    a(f'buffer_store_dword v2, v2, s[{SRD_WS}:{SRD_WS+3}], s6 offen sc1')
    a.label(l1)
    a('s_cmp_ge_u32 s2, 8')
    a(f's_cbranch_scc1 {l2}')
    a('s_lshl_b32 s6, s2, 7')
    a(f's_add_u32 s6, s6, {WS_CNT + 4096}')
    a(f'buffer_store_dword v2, v2, s[{SRD_WS}:{SRD_WS+3}], s6 offen sc1')
    a.label(l2)
    a('s_mov_b64 exec, s[46:47]')
    a.label(lno)
```

```python
import sys, argparse
from common import *
import phase_pro as P
import phase_kgen as KG
import phase_conv as CV
import phase_mlp as M

HEADER = open('cdna_kernels/' + KNAME[:-7] + '.s.ref').read().split('; Override launch')[0]

def dump_lds(a, lds, nbytes, wsoff):
    a('s_mul_i32 s6, s2, 98304')
    a(f's_add_u32 s6, s6, {WS_DBG + wsoff}')
    a('v_lshlrev_b32 v2, 4, v0')
    for k in range(0, nbytes, 8192):
        a(f'v_add_u32 v3, {lds + k}, v2')
        a('ds_read_b128 v[4:7], v3')
        a('s_waitcnt lgkmcnt(0)')
        a(f'v_add_u32 v3, {k}, v2')
        if k + 8192 > nbytes:
            a(f'v_cmp_gt_u32 vcc, {nbytes}, v3')
            a('s_and_saveexec_b64 s[46:47], vcc')
        a(f'buffer_store_dwordx4 v[4:7], v3, s[{SRD_WS}:{SRD_WS+3}], s6 offen')
        if k + 8192 > nbytes: a('s_mov_b64 exec, s[46:47]')
        a('s_waitcnt vmcnt(0)')

def build(stop='all'):
    a = Asm()
    P.entry(a)
    P.first_loads(a)
    P.repack(a)
    P.bias_stage(a)
    P.ln1(a)
    P.xnt_tile(a)
    a('s_waitcnt lgkmcnt(0)')
    a('s_barrier')
    P.xnt_publish(a)
    if stop == 'pro':
        a('s_waitcnt vmcnt(0)')
        a('s_branch L_end')
    KG.tables(a)
    a('s_waitcnt vmcnt(0) lgkmcnt(0)')
    a('s_barrier')
    CV.arrive_a(a)
    KG.tasks(a)
    a('s_waitcnt lgkmcnt(0)')
    a('s_barrier')
    if stop == 'kgen':
        dump_lds(a, LDS_KREV, 3 * KREV_CH, 0)
    KG.ln2(a)
    CV.wait_a(a)
    a('s_waitcnt lgkmcnt(0)')
    a('s_barrier')
    if stop == 'kgen':
        dump_lds(a, LDS_Y, 73728, 16384)
        a('s_waitcnt vmcnt(0)')
        a('s_branch L_end')
    CV.conv_setup(a)
    lhi = a.new_label('hi'); lj1 = a.new_label('j1'); lnoc = a.new_label('noC')
    a('s_cmp_ge_u32 s5, 4')
    a(f's_cbranch_scc1 {lhi}')
    a('s_and_b32 s76, s5, 1')
    a('s_lshl_b32 s76, s76, 1')
    CV.u_loads(a, 2, 76)
    M.stream_start(a, 4)
    M.l2_prefetch(a)
    a('s_waitcnt vmcnt(10)')
    CV.u_build(a, 2, 76)
    a(f's_branch {lj1}')
    a.label(lhi)
    a('s_cmp_ge_u32 s2, 64')
    a(f's_cbranch_scc1 {lnoc}')
    a('s_sub_u32 s76, s5, 4')
    CV.u_loads(a, 1, 76)
    M.stream_start(a, 5)
    M.l2_prefetch(a)
    a('s_waitcnt vmcnt(12)')
    CV.u_build(a, 1, 76)
    a(f's_branch {lj1}')
    a.label(lnoc)
    M.stream_start(a, 5)
    M.l2_prefetch(a)
    a.label(lj1)
    a('s_waitcnt lgkmcnt(0)')
    a('s_barrier')
    lhi2 = a.new_label('hi2'); lj2 = a.new_label('j2'); lodd = a.new_label('odd')
    a('s_cmp_ge_u32 s5, 4')
    a(f's_cbranch_scc1 {lhi2}')
    a('s_bitcmp1_b32 s5, 0')
    a(f's_cbranch_scc1 {lodd}')
    CV.conv_body(a, [0, 3, 4, 7])
    CV.conv_done(a)
    a(f's_branch {lj2}')
    a.label(lodd)
    CV.conv_body(a, [1, 2, 5, 6])
    CV.conv_done(a)
    a(f's_branch {lj2}')
    a.label(lhi2)
    a('s_cmp_ge_u32 s2, 64')
    a(f's_cbranch_scc1 {lj2}')
    lq = [a.new_label(f'q{q}') for q in range(4)]
    for q in range(1, 4):
        a(f's_cmp_eq_u32 s5, {4+q}')
        a(f's_cbranch_scc1 {lq[q]}')
    for q in range(4):
        a.label(lq[q])
        CV.conv_body(a, [q, 7 - q])
        CV.conv_done(a)
        if q < 3: a(f's_branch {lj2}')
    a.label(lj2)
    if stop == 'conv':
        a('s_waitcnt vmcnt(0)')
        a('s_branch L_end')
    l5 = a.new_label('n5'); l5b = a.new_label('n5b'); lh = a.new_label('hbar'); lpub = a.new_label('pub')
    a('s_cmp_ge_u32 s5, 4')
    a(f's_cbranch_scc1 {l5}')
    M.gemm1(a, 4)
    M.gelu(a, 4)
    a(f's_branch {lh}')
    a.label(l5)
    M.gemm1(a, 5)
    M.gelu(a, 5)
    a.label(lh)
    a('s_waitcnt lgkmcnt(0)')
    a('s_barrier')
    M.arrive_b(a)
    a('s_cmp_ge_u32 s5, 4')
    a(f's_cbranch_scc1 {l5b}')
    M.gemm2(a, 4)
    M.publish(a, 4)
    a(f's_branch {lpub}')
    a.label(l5b)
    M.gemm2(a, 5)
    M.publish(a, 5)
    a.label(lpub)
    a('s_waitcnt vmcnt(0)')
    a('s_barrier')
    M.arrive_c(a)
    a('s_cmp_gt_u32 s5, 4')
    a('s_cbranch_scc1 L_end')
    M.final_x_loads(a)
    M.wait_bc(a, CV.SPIN_MAX)
    a('s_barrier')
    M.final(a)
    a.label('L_end')
    a('s_endpgm')
    lines, nn = a.finish()
    src = HEADER
    src += f'; @launch grid=(256,1,1) block=(512,1,1) lds={LDS_TOTAL}\n'
    src += '.amdgcn_target "amdgcn-amd-amdhsa--gfx950"\n.text\n'
    src += f'.globl {KNAME}\n.p2align 8\n.type {KNAME},@function\n{KNAME}:\n'
    src += '\n'.join(lines) + '\n'
    src += f'''.section .rodata,"a"
.p2align 6
.amdhsa_kernel {KNAME}
  .amdhsa_next_free_vgpr 256
  .amdhsa_next_free_sgpr 102
  .amdhsa_accum_offset 256
  .amdhsa_group_segment_fixed_size 0
  .amdhsa_kernarg_size 120
  .amdhsa_user_sgpr_count 2
  .amdhsa_user_sgpr_kernarg_segment_ptr 1
  .amdhsa_system_sgpr_workgroup_id_x 1
  .amdhsa_float_denorm_mode_32 3
.end_amdhsa_kernel
'''
    return src, nn, len(lines)

if __name__ == '__main__':
    ap = argparse.ArgumentParser()
    ap.add_argument('--stop', default='all')
    ap.add_argument('-o', default='k.s')
    args = ap.parse_args()
    src, nn, n = build(args.stop)
    open(args.o, 'w').write(src)
    print(f'{n} lines, {nn} nop pads -> {args.o}')
```
